```python
import torch

def _softmax(x, axis=-1):
    return torch.softmax(x, dim=axis)
def _gelu(x):
    return torch.nn.functional.gelu(x, approximate="tanh")
def _silu(x):
    return torch.nn.functional.silu(x)
def _sigmoid(x):
    return torch.sigmoid(x)
def _layernorm(x, axis=-1, eps=1e-5):
    m = x.mean(dim=axis, keepdim=True)
    v = x.var(dim=axis, keepdim=True, unbiased=False)
    return (x - m) / torch.sqrt(v + eps)
def _scatter_add(tgt, idx, src, axis=0):
    return tgt.clone().index_add_(axis, idx, src)
def _segment_sum(src, seg, n):
    out = torch.zeros((n,) + src.shape[1:], dtype=src.dtype)
    return out.index_add_(0, seg, src)
def _pad(x, pw):
    flat = tuple(v for pair in reversed(pw) for v in pair)
    return torch.nn.functional.pad(x, flat)

kernel_name = 'standalone__standard_2d_1d_3d_conv__vision'

def setup_inputs():

    _w = (lambda a: (lambda t: t.to(torch.bfloat16) if t.is_floating_point() else t)(torch.as_tensor(a)))
    H = W = 256
    C = 384
    K = 1
    return {
        "x": _w((lambda *s: torch.randn(*s, dtype=torch.bfloat16) * 0.05)(1, H, W, C)),
        "w": _w((lambda *s: torch.randn(*s, dtype=torch.bfloat16) * 0.05)(K, K, C, C)),
        "b": _w((lambda *s: torch.randn(*s, dtype=torch.bfloat16) * 0.05)(C)),
    }

def reference(x, w, b):
    B, H, W, Cin = x.shape
    K = w.shape[0]
    pl = (K - 1) // 2
    pr = K // 2
    xp = _pad(x, ((0, 0), (pl, pr), (pl, pr), (0, 0)))
    out = sum(
        torch.einsum('bhwc,cd->bhwd', xp[:, i:i+H, j:j+W, :], w[i, j])
        for i in range(K) for j in range(K)
    )
    return out + b[None, None, None, :]
```

```python
import sys

NAME = "standalone__standard_2d_1d_3d_conv__vision"
ROWB = 768
SLOT = 24576
NSLOT = 6
NT = 8
LDS = SLOT * NSLOT

L = []
def e(s): L.append("    " + s)
def lab(s): L.append(s + ":")

vm = []
def vm_issue(tag): vm.append(tag)
def vm_wait_for(tags):
    last = max(i for i, t in enumerate(vm) if t in tags)
    n = len(vm) - 1 - last
    assert n <= 63, n
    e(f"s_waitcnt vmcnt({n})")

W0 = 0
ACC = 144
BIAS = 168
XF = 180
XA = 212
XD = 216
WD = 219
WA = 222
OA = 225
PK = 226
T0 = 238
NV = 248

def wfrag(ks, nb): return W0 + (ks * 3 + nb) * 4
def acc(mb, nb): return ACC + (mb * 3 + nb) * 4

e("s_cmp_ge_u32 s2, 256")
e("s_cbranch_scc1 L_end")
e("s_load_dwordx8 s[4:11], s[0:1], 0")
e(f"v_lshrrev_b32 v{T0}, 6, v0")
e(f"v_and_b32 v{T0+1}, 63, v0")
e("s_nop 0")
e(f"v_readfirstlane_b32 s28, v{T0}")
e("s_mul_i32 s29, s2, 196608")
e("s_waitcnt lgkmcnt(0)")
e("s_mov_b32 s12, s4"); e("s_and_b32 s13, s5, 0xffff"); e("s_mov_b32 s14, 50331648"); e("s_mov_b32 s15, 0x00020000")
e("s_mov_b32 s16, s6"); e("s_and_b32 s17, s7, 0xffff"); e("s_mov_b32 s18, 294912");   e("s_mov_b32 s19, 0x00020000")
e("s_mov_b32 s20, s8"); e("s_and_b32 s21, s9, 0xffff"); e("s_mov_b32 s22, 768");      e("s_mov_b32 s23, 0x00020000")
e("s_mov_b32 s24, s10"); e("s_and_b32 s25, s11, 0xffff"); e("s_mov_b32 s26, 50331648"); e("s_mov_b32 s27, 0x00020000")
lane = T0 + 1
e("s_mul_i32 s30, s28, 192")
for j in range(3):
    p, q, r, ch, t = T0+2, T0+3, T0+4, T0+5, T0+6
    e(f"v_add_u32 v{p}, s30, v{lane}")
    if j: e(f"v_add_u32 v{p}, {64*j}, v{p}")
    e(f"v_lshrrev_b32 v{q}, 4, v{p}")
    e(f"v_mul_u32_u24 v{r}, 171, v{q}")
    e(f"v_lshrrev_b32 v{r}, 9, v{r}")
    e(f"v_mul_u32_u24 v{t}, 48, v{r}")
    e(f"v_sub_u32 v{ch}, v{p}, v{t}")
    e(f"v_and_b32 v{t}, 15, v{r}")
    e(f"v_xor_b32 v{t}, v{ch}, v{t}")
    e(f"v_lshlrev_b32 v{t}, 4, v{t}")
    e(f"v_mul_u32_u24 v{XD+j}, 768, v{r}")
    e(f"v_add_u32 v{XD+j}, v{XD+j}, v{t}")
    e(f"v_and_b32 v{t}, 3, v{r}")
    e(f"v_lshlrev_b32 v{t}, 1, v{t}")
    e(f"v_and_b32 v{q}, 8, v{r}")
    e(f"v_or_b32 v{t}, v{t}, v{q}")
    e(f"v_xor_b32 v{t}, v{ch}, v{t}")
    e(f"v_lshlrev_b32 v{t}, 4, v{t}")
    e(f"v_mul_u32_u24 v{WD+j}, 768, v{r}")
    e(f"v_add_u32 v{WD+j}, v{WD+j}, v{t}")
m16, g = T0+2, T0+3
e(f"v_and_b32 v{m16}, 15, v{lane}")
e(f"v_lshrrev_b32 v{g}, 4, v{lane}")
for q in range(4):
    t = T0+4
    e(f"v_add_u32 v{t}, {4*q}, v{g}")
    e(f"v_xor_b32 v{t}, v{t}, v{m16}")
    e(f"v_lshlrev_b32 v{t}, 4, v{t}")
    e(f"v_mul_u32_u24 v{XA+q}, 768, v{m16}")
    e(f"v_add_u32 v{XA+q}, v{XA+q}, v{t}")
e("s_mul_i32 s31, s28, 96")
e(f"v_mul_u32_u24 v{OA}, 768, v{m16}")
e(f"v_mul_u32_u24 v{T0+4}, 24, v{g}")
e(f"v_add_u32 v{OA}, v{OA}, v{T0+4}")
e(f"v_add_u32 v{OA}, s31, v{OA}")
e(f"v_add_u32 v{T0+5}, s31, v{T0+4}")
r4, cc, kr, rho = T0+6, T0+7, T0+4, T0+2
e(f"v_lshrrev_b32 v{r4}, 2, v{m16}")
e(f"v_and_b32 v{cc}, 3, v{m16}")
e(f"v_lshlrev_b32 v{kr}, 3, v{g}")
e(f"v_add_u32 v{kr}, v{kr}, v{r4}")
e(f"v_and_b32 v{rho}, 1, v{g}")
e(f"v_lshlrev_b32 v{rho}, 2, v{rho}")
e(f"v_or_b32 v{rho}, v{rho}, v{r4}")
e(f"v_lshlrev_b32 v{rho}, 5, v{rho}")
e(f"v_mul_u32_u24 v{kr}, 768, v{kr}")
e(f"v_mul_u32_u24 v{cc}, 24, v{cc}")
e(f"v_add_u32 v{cc}, s31, v{cc}")
for nb in range(3):
    e(f"v_add_u32 v{WA+nb}, {8*nb}, v{cc}")
    e(f"v_xor_b32 v{WA+nb}, v{WA+nb}, v{rho}")
    e(f"v_add_u32 v{WA+nb}, v{WA+nb}, v{kr}")
    e(f"v_add_u32 v{WA+nb}, {2*SLOT}, v{WA+nb}")
e("s_mul_i32 s32, s28, 3072")

def dma_x(t):
    slot = t % NSLOT
    e(f"s_add_u32 s33, s29, {t*SLOT}")
    for j in range(3):
        e(f"s_add_u32 m0, s32, {slot*SLOT + j*1024}")
        e("s_nop 0")
        e(f"buffer_load_dwordx4 v{XD+j}, s[12:15], s33 offen lds")
        vm_issue(("x", t))

def dma_w(c):
    slot = 2 + c % 4
    e(f"s_mov_b32 s33, {c*SLOT}")
    for j in range(3):
        e(f"s_add_u32 m0, s32, {slot*SLOT + j*1024}")
        e("s_nop 0")
        e(f"buffer_load_dwordx4 v{WD+j}, s[16:19], s33 offen lds")
        vm_issue(("w", c))

dma_x(0); dma_x(1)
e(f"buffer_load_dwordx4 v[{PK}:{PK+3}], v{T0+5}, s[20:23], 0 offen"); vm_issue("b")
e(f"buffer_load_dwordx2 v[{PK+4}:{PK+5}], v{T0+5}, s[20:23], 0 offen offset:16"); vm_issue("b")
for c in range(4): dma_w(c)
vm_wait_for({"b"})
for i in range(6):
    e(f"v_lshlrev_b32 v{BIAS+2*i}, 16, v{PK+i}")
    e(f"v_and_b32 v{BIAS+2*i+1}, 0xffff0000, v{PK+i}")
for c in range(12):
    vm_wait_for({("w", c)})
    e("s_barrier")
    if c >= 1:
        if c + 3 <= 11: dma_w(c + 3)
        else: dma_x(2 + (c - 1) - 8)
    for nb in range(3):
        for hh in range(2):
            f = wfrag(c, nb) + 2 * hh
            e(f"ds_read_b64_tr_b16 v[{f}:{f+1}], v{WA+nb} offset:{hh*3072}")
    d = SLOT if c % 4 != 3 else -3 * SLOT
    for nb in range(3):
        e(f"v_add_u32 v{WA+nb}, {d & 0xffffffff}, v{WA+nb}")
    e("s_waitcnt lgkmcnt(0)")

def xread(ks, mb, slotidx):
    f = XF + ((ks % 4) * 2 + mb) * 4
    off = mb * 12288 + (ks // 4) * 256
    e(f"ds_read_b128 v[{f}:{f+3}], v{XA + ks % 4} offset:{off}")

for t in range(NT):
    vm_wait_for({("x", t)})
    e("s_barrier")
    if t + 5 < NT: dma_x(t + 5)
    for ks in range(4):
        for mb in range(2): xread(ks, mb, t)
    for ks in range(12):
        outstanding = min(8, (12 - ks) * 2)
        e(f"s_waitcnt lgkmcnt({outstanding - 2})")
        for mb in range(2):
            f = XF + ((ks % 4) * 2 + mb) * 4
            for nb in range(3):
                a = acc(mb, nb); w = wfrag(ks, nb)
                c = (BIAS + nb * 4) if ks == 0 else a
                e(f"v_mfma_f32_16x16x32_bf16 v[{a}:{a+3}], v[{w}:{w+3}], v[{f}:{f+3}], v[{c}:{c+3}]")
        if ks + 4 < 12:
            for mb in range(2): xread(ks + 4, mb, t)
    d = SLOT if t % NSLOT != NSLOT - 1 else -(NSLOT - 1) * SLOT
    for q in range(4):
        e(f"v_add_u32 v{XA+q}, {d & 0xffffffff}, v{XA+q}")
    e(f"s_add_u32 s34, s29, {t*SLOT}")
    e("s_nop 2")
    for mb in range(2):
        for nb in range(3):
            a = acc(mb, nb); p = PK + mb * 6 + nb * 2
            e(f"v_cvt_pk_bf16_f32 v{p}, v{a}, v{a+1}")
            e(f"v_cvt_pk_bf16_f32 v{p+1}, v{a+2}, v{a+3}")
        p = PK + mb * 6
        e(f"buffer_store_dwordx4 v[{p}:{p+3}], v{OA}, s[24:27], s34 offen offset:{mb*12288 if mb*12288 < 4096 else 0}" if mb == 0 else
          f"buffer_store_dwordx4 v[{p}:{p+3}], v{OA}, s[24:27], s35 offen")
        vm_issue(("o", t))
        e(f"buffer_store_dwordx2 v[{p+4}:{p+5}], v{OA}, s[24:27], {'s34' if mb == 0 else 's35'} offen offset:16")
        vm_issue(("o", t))
        if mb == 0: e("s_add_u32 s35, s34, 12288")
lab("L_end")
e("s_endpgm")

hdr = open("cdna_kernels/%s.s.ref" % NAME).read().split("\n")
top = [l for l in hdr if l.startswith(";") and not l.startswith("; @launch")]
out = "\n".join(top) + "\n"
out += f"; @launch grid=(256,1,1) block=(512,1,1) lds={LDS}\n"
out += f'.amdgcn_target "amdgcn-amd-amdhsa--gfx950"\n.text\n.globl {NAME}_kernel\n.p2align 8\n.type {NAME}_kernel,@function\n{NAME}_kernel:\n'
out += "\n".join(L) + "\n"
out += f""".section .rodata,"a"
.p2align 6
.amdhsa_kernel {NAME}_kernel
  .amdhsa_next_free_vgpr {NV}
  .amdhsa_next_free_sgpr 40
  .amdhsa_accum_offset {NV}
  .amdhsa_group_segment_fixed_size 0
  .amdhsa_kernarg_size 48
  .amdhsa_user_sgpr_count 2
  .amdhsa_user_sgpr_kernarg_segment_ptr 1
  .amdhsa_system_sgpr_workgroup_id_x 1
.end_amdhsa_kernel
"""
dst = sys.argv[1] if len(sys.argv) > 1 else "cdna_kernels/%s.s" % NAME
open(dst, "w").write(out)
print("wrote", dst, len(L), "lines")
```

```python
import sys, os

NAME = "standalone__standard_2d_1d_3d_conv__vision"
ROWB = 768
SLOT = 24576
NSLOT = 6
NT = 8
LDS = SLOT * NSLOT
NWS = int(os.environ.get('NWS', 3))
WS0 = NSLOT - NWS

L = []
STAMP = len(sys.argv) > 2 and sys.argv[2] == "stamp"
nst = [0]
def stamp():
    if STAMP:
        i = nst[0]; nst[0] += 1
        L.append(f"    s_memtime s[{40+2*i}:{41+2*i}]")
def e(s): L.append("    " + s)
def lab(s): L.append(s + ":")

vm = []
def vm_issue(tag): vm.append(tag)
def vm_wait_for(tags):
    last = max(i for i, t in enumerate(vm) if t in tags)
    n = len(vm) - 1 - last
    assert n <= 63, n
    e(f"s_waitcnt vmcnt({n})")

W0 = 0
ACC = 144
BIAS = 168
XF = 180
XA = 212
XD = 216
WD = 219
WA = 222
OA = 225
PK = 226
T0 = 238
NV = 248

def wfrag(ks, nb): return W0 + (ks * 3 + nb) * 4
def acc(mb, nb): return ACC + (mb * 3 + nb) * 4

e("s_cmp_ge_u32 s2, 256")
e("s_cbranch_scc1 L_end")
e("s_load_dwordx8 s[4:11], s[0:1], 0")
stamp()
e(f"v_lshrrev_b32 v{T0}, 6, v0")
e(f"v_and_b32 v{T0+1}, 63, v0")
e("s_nop 0")
e(f"v_readfirstlane_b32 s28, v{T0}")
e("s_mul_i32 s29, s2, 196608")
e("s_waitcnt lgkmcnt(0)")
e("s_mov_b32 s12, s4"); e("s_and_b32 s13, s5, 0xffff"); e("s_mov_b32 s14, 50331648"); e("s_mov_b32 s15, 0x00020000")
e("s_mov_b32 s16, s6"); e("s_and_b32 s17, s7, 0xffff"); e("s_mov_b32 s18, 294912");   e("s_mov_b32 s19, 0x00020000")
e("s_mov_b32 s20, s8"); e("s_and_b32 s21, s9, 0xffff"); e("s_mov_b32 s22, 768");      e("s_mov_b32 s23, 0x00020000")
e("s_mov_b32 s24, s10"); e("s_and_b32 s25, s11, 0xffff"); e("s_mov_b32 s26, 50331648"); e("s_mov_b32 s27, 0x00020000")
def gen_body(cls):
    global vm
    vm = []
    lane = T0 + 1
    e("s_and_b32 s30, s28, 3")
    e("s_mul_i32 s30, s30, 384")
    for j in range(6):
        p, q, r, ch, t = T0+2, T0+3, T0+4, T0+5, T0+6
        e(f"v_add_u32 v{p}, s30, v{lane}")
        if j: e(f"v_add_u32 v{p}, {64*j}, v{p}")
        e(f"v_lshrrev_b32 v{q}, 4, v{p}")
        e(f"v_mul_u32_u24 v{r}, 171, v{q}")
        e(f"v_lshrrev_b32 v{r}, 9, v{r}")
        e(f"v_mul_u32_u24 v{t}, 48, v{r}")
        e(f"v_sub_u32 v{ch}, v{p}, v{t}")
        if cls == 1:
            e(f"v_and_b32 v{t}, 15, v{r}")
        else:
            e(f"v_and_b32 v{t}, 3, v{r}")
            e(f"v_lshlrev_b32 v{t}, 1, v{t}")
            e(f"v_and_b32 v{q}, 8, v{r}")
            e(f"v_or_b32 v{t}, v{t}, v{q}")
        e(f"v_xor_b32 v{t}, v{ch}, v{t}")
        e(f"v_lshlrev_b32 v{t}, 4, v{t}")
        e(f"v_mul_u32_u24 v{XD+j}, 768, v{r}")
        e(f"v_add_u32 v{XD+j}, v{XD+j}, v{t}")
    m16, g = T0+2, T0+3
    e(f"v_and_b32 v{m16}, 15, v{lane}")
    e(f"v_lshrrev_b32 v{g}, 4, v{lane}")
    for q in range(4):
        t = T0+4
        e(f"v_add_u32 v{t}, {4*q}, v{g}")
        e(f"v_xor_b32 v{t}, v{t}, v{m16}")
        e(f"v_lshlrev_b32 v{t}, 4, v{t}")
        e(f"v_mul_u32_u24 v{XA+q}, 768, v{m16}")
        e(f"v_add_u32 v{XA+q}, v{XA+q}, v{t}")
    e("s_mul_i32 s31, s28, 96")
    e(f"v_mul_u32_u24 v{OA}, 768, v{m16}")
    e(f"v_mul_u32_u24 v{T0+4}, 24, v{g}")
    e(f"v_add_u32 v{OA}, v{OA}, v{T0+4}")
    e(f"v_add_u32 v{OA}, s31, v{OA}")
    e(f"v_add_u32 v{T0+5}, s31, v{T0+4}")
    r4, cc, kr, rho = T0+6, T0+7, T0+4, T0+2
    e(f"v_lshrrev_b32 v{r4}, 2, v{m16}")
    e(f"v_and_b32 v{cc}, 3, v{m16}")
    e(f"v_lshlrev_b32 v{kr}, 3, v{g}")
    e(f"v_add_u32 v{kr}, v{kr}, v{r4}")
    e(f"v_and_b32 v{rho}, 1, v{g}")
    e(f"v_lshlrev_b32 v{rho}, 2, v{rho}")
    e(f"v_or_b32 v{rho}, v{rho}, v{r4}")
    e(f"v_lshlrev_b32 v{rho}, 5, v{rho}")
    e(f"v_mul_u32_u24 v{kr}, 768, v{kr}")
    e(f"v_mul_u32_u24 v{cc}, 24, v{cc}")
    e(f"v_add_u32 v{cc}, s31, v{cc}")
    for nb in range(3):
        e(f"v_add_u32 v{WA+nb}, {8*nb}, v{cc}")
        e(f"v_xor_b32 v{WA+nb}, v{WA+nb}, v{rho}")
        e(f"v_add_u32 v{WA+nb}, v{WA+nb}, v{kr}")
        e(f"v_add_u32 v{WA+nb}, {WS0*SLOT}, v{WA+nb}")
    e("s_and_b32 s32, s28, 3")
    e("s_mul_i32 s32, s32, 6144")

    def dma_x(t):
        if cls != 1: return
        slot = t % NSLOT
        e(f"s_add_u32 s33, s29, {t*SLOT}")
        for j in range(6):
            e(f"s_add_u32 m0, s32, {slot*SLOT + j*1024}")
            e("s_nop 0")
            e(f"buffer_load_dwordx4 v{XD+j}, s[12:15], s33 offen lds")
            vm_issue(("x", t))

    def dma_w(c):
        if cls != 0: return
        slot = WS0 + c % NWS
        e(f"s_mov_b32 s33, {c*SLOT}")
        for j in range(6):
            e(f"s_add_u32 m0, s32, {slot*SLOT + j*1024}")
            e("s_nop 0")
            e(f"buffer_load_dwordx4 v{XD+j}, s[16:19], s33 offen lds")
            vm_issue(("w", c))

    e(f"buffer_load_dwordx4 v[{PK}:{PK+3}], v{T0+5}, s[20:23], 0 offen"); vm_issue("b")
    e(f"buffer_load_dwordx2 v[{PK+4}:{PK+5}], v{T0+5}, s[20:23], 0 offen offset:16"); vm_issue("b")
    for c in range(NWS): dma_w(c)
    for t in range(WS0): dma_x(t)
    vm_wait_for({"b"})
    for i in range(6):
        e(f"v_lshlrev_b32 v{BIAS+2*i}, 16, v{PK+i}")
        e(f"v_and_b32 v{BIAS+2*i+1}, 0xffff0000, v{PK+i}")
    def epilogue(t, accf=acc, pk=PK):
        e(f"s_add_u32 s34, s29, {t*SLOT}")
        e("s_add_u32 s35, s34, 12288")
        for mb in range(2):
            for nb in range(3):
                a = accf(mb, nb); p = pk + mb * 6 + nb * 2
                e(f"v_cvt_pk_bf16_f32 v{p}, v{a}, v{a+1}")
                e(f"v_cvt_pk_bf16_f32 v{p+1}, v{a+2}, v{a+3}")
            p = pk + mb * 6
            so = 's34' if mb == 0 else 's35'
            if os.environ.get("NOSTORE"): continue
            e(f"buffer_store_dwordx4 v[{p}:{p+3}], v{OA}, s[24:27], {so} offen")
            vm_issue(("o", t))
            e(f"buffer_store_dwordx2 v[{p+4}:{p+5}], v{OA}, s[24:27], {so} offen offset:16")
            vm_issue(("o", t))
    def acc2(mb, nb):
        i = mb * 3 + nb
        return XF + 16 + 4 * i if i < 4 else PK + 4 * (i - 4)

    for c in range(12):
        if cls == 1 and c == 0: vm_wait_for({("x", 0), ("x", 1)})
        if cls == 0: vm_wait_for({("w", c)})
        if c in (0, 1, 6, 7): (stamp() if cls == 0 else None)
        e("s_barrier")
        if c in (0, 1, 6, 7): (stamp() if cls == 0 else None)
        if c >= 1:
            if c + NWS - 1 <= 11: dma_w(c + NWS - 1)
            else: dma_x(WS0 + (c - 1) - (12 - NWS))
        for nb in range(3):
            for hh in range(2):
                f = wfrag(c, nb) + 2 * hh
                e(f"ds_read_b64_tr_b16 v[{f}:{f+1}], v{WA+nb} offset:{hh*3072}")
        d = SLOT if c % NWS != NWS - 1 else -(NWS - 1) * SLOT
        for nb in range(3):
            e(f"v_add_u32 v{WA+nb}, {d & 0xffffffff}, v{WA+nb}")
        for tt in range(2):
            for mb in range(2):
                f = XF + (tt * 2 + mb) * 4
                e(f"ds_read_b128 v[{f}:{f+3}], v{XA + c % 4} offset:{tt*SLOT + mb*12288 + (c//4)*256}")
        e("s_waitcnt lgkmcnt(0)")
        for tt in range(2):
            for mb in range(2):
                f = XF + (tt * 2 + mb) * 4
                for nb in range(3):
                    a = (acc if tt == 0 else acc2)(mb, nb); w = wfrag(c, nb)
                    cc_ = (BIAS + nb * 4) if c == 0 else a
                    e(f"v_mfma_f32_16x16x32_bf16 v[{a}:{a+3}], v[{w}:{w+3}], v[{f}:{f+3}], v[{cc_}:{cc_+3}]")
    e("s_nop 7")
    epilogue(1, acc2, XF)
    e("s_nop 1")
    epilogue(0, acc, XF)
    for q in range(4):
        e(f"v_add_u32 v{XA+q}, {2*SLOT}, v{XA+q}")

    (stamp() if cls == 0 else None)
    def xread(ks, mb, slotidx):
        f = XF + ((ks % 4) * 2 + mb) * 4
        off = mb * 12288 + (ks // 4) * 256
        e(f"ds_read_b128 v[{f}:{f+3}], v{XA + ks % 4} offset:{off}")

    PD = 4
    def mainloop(cls):
        for t in range(2, NT):
            if cls == 0 or t == 2:
                if cls == 1: vm_wait_for({("x", t)})
                e("s_barrier")
                if cls == 0: (stamp() if cls == 0 else None)
                if t == 2: dma_x(5); dma_x(6)
            for ks in range(4):
                for mb in range(2): xread(ks, mb, t)
            if t > 2: epilogue(t - 1)
            if cls == 0 and t >= 1 and t + PD < NT: dma_x(t + PD)
            for ks in range(12):
                outstanding = min(8, (12 - ks) * 2)
                if cls == 1 and ks == 6 and t + 1 < NT:
                    vm_wait_for({("x", t + 1)})
                    e("s_barrier")
                    if t + 1 + PD < NT: dma_x(t + 1 + PD)
                e(f"s_waitcnt lgkmcnt({outstanding - 2})")
                for mb in range(2):
                    f = XF + ((ks % 4) * 2 + mb) * 4
                    for nb in range(3):
                        a = acc(mb, nb); w = wfrag(ks, nb)
                        c = (BIAS + nb * 4) if ks == 0 else a
                        e(f"v_mfma_f32_16x16x32_bf16 v[{a}:{a+3}], v[{w}:{w+3}], v[{f}:{f+3}], v[{c}:{c+3}]")
                if ks + 4 < 12:
                    for mb in range(2): xread(ks + 4, mb, t)
            d = SLOT if t % NSLOT != NSLOT - 1 else -(NSLOT - 1) * SLOT
            for q in range(4):
                e(f"v_add_u32 v{XA+q}, {d & 0xffffffff}, v{XA+q}")
        e("s_nop 7")
        epilogue(NT - 1)

    mainloop(cls)

e("s_cmp_ge_u32 s28, 4")
e("s_cbranch_scc1 L_b")
gen_body(0)
e("s_branch L_fin")
lab("L_b")
gen_body(1)
lab("L_fin")
if STAMP:
    e("s_waitcnt vmcnt(0)")
    stamp()
    e("s_waitcnt lgkmcnt(0)")
    e("s_load_dwordx2 s[36:37], s[0:1], 32")
    e("s_waitcnt lgkmcnt(0)")
    e("s_and_b32 s37, s37, 0xffff"); e("s_mov_b32 s38, 256"); e("s_mov_b32 s39, 0x00020000")
    e("s_cmp_lg_u32 s2, 0"); e("s_cbranch_scc1 L_end")
    e("s_cmp_lg_u32 s28, 0"); e("s_cbranch_scc1 L_end")
    e(f"v_mov_b32 v{T0}, 0")
    for i in range(nst[0]):
        e(f"v_mov_b32 v{T0+1}, s{40+2*i}")
        e(f"buffer_store_dword v{T0+1}, v{T0}, s[36:39], 0 offen offset:{4*i}")
        e("s_nop 1")
lab("L_end")
e("s_endpgm")

hdr = open("cdna_kernels/%s.s.ref" % NAME).read().split("\n")
top = [l for l in hdr if l.startswith(";") and not l.startswith("; @launch")]
out = "\n".join(top) + "\n"
out += f"; @launch grid=(256,1,1) block=(512,1,1) lds={LDS}\n"
out += f'.amdgcn_target "amdgcn-amd-amdhsa--gfx950"\n.text\n.globl {NAME}_kernel\n.p2align 8\n.type {NAME}_kernel,@function\n{NAME}_kernel:\n'
out += "\n".join(L) + "\n"
out += f""".section .rodata,"a"
.p2align 6
.amdhsa_kernel {NAME}_kernel
  .amdhsa_next_free_vgpr {NV}
  .amdhsa_next_free_sgpr 90
  .amdhsa_accum_offset {NV}
  .amdhsa_group_segment_fixed_size 0
  .amdhsa_kernarg_size 48
  .amdhsa_user_sgpr_count 2
  .amdhsa_user_sgpr_kernarg_segment_ptr 1
  .amdhsa_system_sgpr_workgroup_id_x 1
.end_amdhsa_kernel
"""
dst = sys.argv[1] if len(sys.argv) > 1 else "cdna_kernels/%s.s" % NAME
open(dst, "w").write(out)
print("wrote", dst, len(L), "lines")
```
